```python
import torch

def _softmax(x, axis=-1):
    return torch.softmax(x, dim=axis)

def _gelu(x):
    return torch.nn.functional.gelu(x, approximate='tanh')

def _silu(x):
    return torch.nn.functional.silu(x)

def _sigmoid(x):
    return torch.sigmoid(x)

def _layernorm(x, axis=-1, eps=1e-05):
    m = x.mean(dim=axis, keepdim=True)
    v = x.var(dim=axis, keepdim=True, unbiased=False)
    return (x - m) / torch.sqrt(v + eps)

def _scatter_add(tgt, idx, src, axis=0):
    return tgt.clone().index_add_(axis, idx, src)

def _segment_sum(src, seg, n):
    out = torch.zeros((n,) + src.shape[1:], dtype=src.dtype)
    return out.index_add_(0, seg, src)

def _pad(x, pw):
    flat = tuple((v for pair in reversed(pw) for v in pair))
    return torch.nn.functional.pad(x, flat)
kernel_name = 'adaLN_cond__softmax_full_mha__mixer_gmlp__prompt'

def setup_inputs():

    _w = lambda a: (lambda t: t.to(torch.bfloat16) if t.is_floating_point() else t)(torch.as_tensor(a))

    def _A_setup():
        B, S, D = (1, 2048, 640)
        return {'x': _w((lambda *s: torch.randn(*s, dtype=torch.bfloat16) * 0.05)(B, S, D)), 'wqkv': _w((lambda *s: torch.randn(*s, dtype=torch.bfloat16) * 0.05)(D, 3 * D)), 'wo': _w((lambda *s: torch.randn(*s, dtype=torch.bfloat16) * 0.05)(D, D))}
    _A_in = _A_setup()

    def _B_setup():
        B, S, D, F = (1, 2048, 640, 1728)
        Fh = F // 2
        return {'x': _w((lambda *s: torch.randn(*s, dtype=torch.bfloat16) * 0.05)(B, S, D)), 'w_in': _w((lambda *s: torch.randn(*s, dtype=torch.bfloat16) * 0.4)(D, 2 * Fh)), 'w_sp': _w(0.01 * (lambda *s: torch.randn(*s, dtype=torch.bfloat16) * 0.4)(S, S)), 'b_sp': _w(1.0 + 0.01 * (lambda *s: torch.randn(*s, dtype=torch.bfloat16) * 0.05)(S)), 'w_out': _w((lambda *s: torch.randn(*s, dtype=torch.bfloat16) * 0.05)(Fh, D))}
    _B_in = _B_setup()
    return {'A_x': _A_in['x'], 'A_wqkv': _A_in['wqkv'], 'A_wo': _A_in['wo'], 'B_x': _B_in['x'], 'B_w_in': _B_in['w_in'], 'B_w_sp': _B_in['w_sp'], 'B_b_sp': _B_in['b_sp'], 'B_w_out': _B_in['w_out'], 'c': _w((lambda *s: torch.randn(*s, dtype=torch.bfloat16) * 0.1)(1, 640) * 8.0), 'w_mod': _w((lambda *s: torch.randn(*s, dtype=torch.bfloat16) * 0.1)(640, 6 * 640) * 640 ** (-0.5) * 8.0)}

def reference(A_x, A_wqkv, A_wo, B_x, B_w_in, B_w_sp, B_b_sp, B_w_out, c, w_mod):

    def _A_ref(x, wqkv, wo):
        B, S, D = x.shape
        H = 32
        Dh = D // H
        qkv = (lambda x, *d: x.permute(*d))((x @ wqkv).reshape(B, S, 3, H, Dh), 2, 0, 3, 1, 4)
        q, k, v = (qkv[0], qkv[1], qkv[2])
        scale = Dh ** (-0.5)
        scores = torch.einsum('bhqd,bhkd->bhqk', q, k) * scale
        p = _softmax(scores, axis=-1)
        o = torch.einsum('bhqk,bhkd->bhqd', p, v)
        return (lambda x, *d: x.permute(*d))(o, 0, 2, 1, 3).reshape(B, S, D) @ wo

    def _B_ref(x, w_in, w_sp, b_sp, w_out):
        B, S, D = x.shape
        F = w_in.shape[-1]
        Fh = F // 2
        z = _gelu(torch.einsum('bsd,df->bsf', x, w_in))
        z1 = z[..., :Fh].clone()
        z2 = _layernorm(z[..., Fh:], axis=-1)
        g = torch.einsum('ts,bsf->btf', w_sp, z2) + b_sp[None, :, None]
        return torch.einsum('bsf,fd->bsd', z1 * g, w_out)
    x = A_x
    mod = (_silu(c) @ w_mod).reshape(c.shape[0], 6, 1, -1)
    sa, ca, ga, sb, cb, gb = (mod[:, 0].clone(), mod[:, 1].clone(), mod[:, 2].clone(), mod[:, 3].clone(), mod[:, 4].clone(), mod[:, 5].clone())
    h = _layernorm(x, axis=-1) * (1 + ca) + sa
    x = x + ga * _A_ref(h, A_wqkv, A_wo)
    h = _layernorm(x, axis=-1) * (1 + cb) + sb
    x = x + gb * _B_ref(h, B_w_in, B_w_sp, B_b_sp, B_w_out)
    return x
```

```python
import re

TRANS = ("v_exp_f32", "v_log_f32", "v_rcp_f32", "v_rsq_f32", "v_sqrt_f32", "v_sin_f32", "v_cos_f32",
         "v_exp_f16", "v_rcp_iflag_f32")

_reg_re = re.compile(r"^(-|\|)?(abs\()?([vsa])(\d+)\)?\|?$")
_rng_re = re.compile(r"^(-)?([vsa])\[(\d+):(\d+)\]$")


def parse_operand(tok):
    tok = tok.strip()
    m = _reg_re.match(tok)
    if m:
        return [(m.group(3), int(m.group(4)))]
    m = _rng_re.match(tok)
    if m:
        return [(m.group(2), i) for i in range(int(m.group(3)), int(m.group(4)) + 1)]
    if tok in ("vcc", "vcc_lo", "vcc_hi"):
        return [("vcc", 0)]
    if tok in ("exec", "exec_lo", "exec_hi"):
        return [("exec", 0)]
    if tok == "m0":
        return [("m0", 0)]
    return []


def split_ops(s):
    ops, depth, cur = [], 0, ""
    for ch in s:
        if ch in "[(":
            depth += 1
        elif ch in "])":
            depth -= 1
        if ch == "," and depth == 0:
            ops.append(cur)
            cur = ""
        else:
            cur += ch
    if cur.strip():
        ops.append(cur)
    return [o.strip() for o in ops]


class Ins:
    __slots__ = ("text", "mn", "dst", "src", "kind", "passes", "srcc", "srcab", "mods", "ws", "target", "wide_store")

    def __init__(self, text):
        self.text = text
        t = text.split(";")[0].strip()
        parts = t.split(None, 1)
        self.mn = parts[0]
        rest = parts[1] if len(parts) > 1 else ""
        ops = split_ops(rest)
        self.mods = ""
        if ops:
            last = ops[-1].split(None, 1)
            ops[-1] = last[0]
            if len(last) > 1:
                self.mods = last[1]
        mn = self.mn
        regs = [parse_operand(o) for o in ops]
        self.dst, self.src = [], []
        self.kind = "other"
        self.passes = 0
        self.srcc, self.srcab = [], []
        self.ws = 1
        self.target = None
        self.wide_store = []
        if mn == "s_nop":
            self.kind = "nop"
            self.ws = int(ops[0], 0) + 1
        elif mn.startswith("v_mfma"):
            self.kind = "mfma"
            self.dst = regs[0]
            self.srcab = regs[1] + regs[2]
            self.srcc = regs[3]
            self.src = self.srcab + self.srcc
            if "32x32" in mn:
                self.passes = 16 if mn.endswith("_f32") and "x2_f32" in mn else 8
            elif "16x16" in mn:
                self.passes = 8 if "x4_f32" in mn else 4
            else:
                self.passes = 2
        elif mn.startswith("v_"):
            self.kind = "valu"
            if mn.startswith("v_cmp"):
                self.dst = regs[0]
                self.src = sum(regs[1:], [])
                assert not mn.startswith("v_cmpx"), "v_cmpx not supported by hazard pass"
            elif "_swap" in mn:
                self.dst = regs[0] + regs[1]
                self.src = regs[0] + regs[1]
            elif mn.startswith(("v_add_co", "v_sub_co", "v_subrev_co", "v_addc_co", "v_subb_co")):
                self.dst = regs[0] + regs[1]
                self.src = sum(regs[2:], [])
            elif mn.startswith(("v_fmac", "v_dot2c", "v_pk_fmac", "v_writelane")):
                self.dst = regs[0]
                self.src = sum(regs, [])
            elif mn == "v_nop":
                pass
            else:
                self.dst = regs[0]
                self.src = sum(regs[1:], [])
            if "dpp" in mn or "row_" in self.mods or "quad_perm" in self.mods:
                self.src = self.src + self.dst
        elif mn.startswith("ds_"):
            self.kind = "ds"
            if mn.startswith(("ds_read", "ds_bpermute", "ds_permute", "ds_swizzle")) or "_rtn" in mn:
                self.dst = regs[0]
                self.src = sum(regs[1:], [])
            else:
                self.src = sum(regs, [])
        elif mn.startswith(("buffer_", "global_", "flat_")):
            self.kind = "vmem"
            lds = re.search(r"\blds\b", self.mods) is not None or "load_lds" in mn
            if mn in ("buffer_wbl2", "buffer_inv"):
                pass
            elif "load" in mn and not lds:
                self.dst = regs[0]
                self.src = sum(regs[1:], [])
                if "d16" in mn:
                    self.src = self.src + self.dst
            elif "load" in mn:
                self.src = sum(regs, []) + [("m0", 0)]
                self.kind = "vmem_lds"
            elif "atomic" in mn:
                self.src = sum(regs, [])
                if "sc0" in self.mods:
                    self.dst = regs[0]
            else:
                self.src = sum(regs, [])
                if "x3" in mn or "x4" in mn:
                    self.wide_store = regs[0] if mn.startswith("buffer_") else regs[1]
        elif mn.startswith("s_"):
            self.kind = "salu"
            if mn.startswith(("s_branch", "s_cbranch")):
                self.kind = "branch"
                self.target = ops[0]
            elif mn.startswith(("s_cmp", "s_waitcnt", "s_barrier", "s_endpgm", "s_sleep", "s_setprio", "s_bitcmp")):
                self.src = sum(regs, [])
            elif mn.startswith(("s_load", "s_buffer_load", "s_memtime", "s_memrealtime", "s_atomic")):
                self.kind = "smem"
                self.dst = regs[0]
                self.src = sum(regs[1:], [])
            else:
                self.dst = regs[0] if regs else []
                self.src = sum(regs[1:], [])
                if "saveexec" in mn:
                    self.dst = self.dst + [("exec", 0)]

    @property
    def is_trans(self):
        return self.mn.replace("_e32", "").replace("_e64", "") in TRANS

    @property
    def is_dot(self):
        return self.mn.startswith("v_dot")


MF_AB = {2: 5, 4: 8, 8: 12, 16: 20}
MF_OVL = {2: 4, 4: 6, 8: 10, 16: 18}
MF_WAR = {2: 1, 4: 3, 8: 7, 16: 15}


def need(p, c):
    n = 0
    pd, cs, cd = set(p.dst), set(c.src), set(c.dst)
    if p.kind == "valu":
        vd = {r for r in pd if r[0] in "va"}
        sd = {r for r in pd if r[0] in ("s", "vcc")}
        if c.kind == "mfma" and vd & cs:
            n = max(n, 2)
        if c.kind == "valu":
            if p.is_trans and not c.is_trans and (vd & (cs | cd)):
                n = max(n, 1)
            if p.is_trans and (vd & cs):
                n = max(n, 1)
            if sd & cs:
                n = max(n, 4 if c.mn.startswith(("v_readlane", "v_writelane")) else 2)
            if c.mn.startswith(("v_readfirstlane", "v_readlane")) and vd & cs:
                n = max(n, 1)
            if ("dpp" in c.mn or "row_" in c.mods or "quad_perm" in c.mods or "permlane" in c.mn) and vd & cs:
                n = max(n, 2)
            if p.is_dot and (vd & (cs | cd)):
                same_c = (p.mn == c.mn) and not (vd & set(c.src[:-len(c.dst)] if not c.mn.startswith("v_dot2c") else c.src[len(c.dst):]))
                if not same_c:
                    n = max(n, 3)
        if c.kind in ("vmem", "vmem_lds", "ds") and p.is_dot and vd & cs:
            n = max(n, 3)
        if c.kind in ("vmem", "vmem_lds") and sd & cs:
            n = max(n, 5)
        if c.kind in ("vmem", "vmem_lds", "ds") and p.is_trans and vd & cs:
            n = max(n, 1)
        if c.kind in ("salu", "smem", "branch") and sd & cs:
            n = max(n, 1)
    elif p.kind == "mfma":
        if c.kind == "mfma":
            if pd & set(c.srcab):
                n = max(n, MF_AB[p.passes])
            if pd & set(c.srcc):
                if list(p.dst) == list(c.srcc) and p.passes == c.passes:
                    n = max(n, 2 if p.passes == 2 else 0)
                else:
                    n = max(n, MF_OVL[p.passes])
            elif pd & cd:
                n = max(n, MF_OVL[p.passes])
        elif c.kind in ("valu", "vmem", "vmem_lds", "ds"):
            if pd & (cs | cd):
                n = max(n, MF_AB[p.passes])
            if c.kind == "valu" and set(p.srcc) & cd:
                n = max(n, MF_WAR[p.passes])
    elif p.kind == "salu":
        if ("m0", 0) in pd and (c.kind == "vmem_lds" or "addtid" in c.mn):
            n = max(n, 1)
    elif p.kind == "vmem":
        if p.wide_store and set(p.wide_store) & cd:
            n = max(n, 2 if c.kind in ("valu", "mfma") else 1)
    return n


class Asm:
    def __init__(self):
        self.items = []
        self._uid = 0

    def __call__(self, text):
        for line in text.strip("\n").split("\n"):
            s = line.strip()
            if not s:
                continue
            if s.startswith(";") or s.startswith("."):
                self.items.append(("r", line))
            elif s.endswith(":"):
                self.items.append(("l", s[:-1]))
            else:
                self.items.append(("i", Ins(s)))

    def label(self, name):
        self.items.append(("l", name))

    def uid(self, prefix="L"):
        self._uid += 1
        return f"{prefix}_{self._uid}"

    def raw(self, text):
        self.items.append(("r", text))

    WINDOW = 24

    def _pad_linear(self, items):
        out = []
        hist = []
        for kind, it in items:
            if kind == "i":
                req = 0
                dist = 0
                for p in reversed(hist):
                    n = need(p, it)
                    if n > dist:
                        req = max(req, n - dist)
                    dist += p.ws
                    if dist >= self.WINDOW:
                        break
                while req > 0:
                    k = min(req, 16)
                    nop = Ins(f"s_nop {k - 1}")
                    out.append(("i", nop))
                    hist.append(nop)
                    req -= k
                out.append((kind, it))
                hist.append(it)
                if it.mn in ("s_endpgm", "s_branch"):
                    hist = []
                hist = hist[-self.WINDOW:]
            else:
                out.append((kind, it))
        return out

    def finalize(self):
        items = self._pad_linear(self.items)
        changed = True
        while changed:
            changed = False
            labels = {it: i for i, (k, it) in enumerate(items) if k == "l"}
            for i, (k, it) in enumerate(items):
                if k != "i" or it.kind != "branch" or it.target not in labels:
                    continue
                pre = []
                j = i
                while j >= 0 and len(pre) < self.WINDOW:
                    if items[j][0] == "i":
                        if j != i and items[j][1].mn in ("s_endpgm", "s_branch"):
                            break
                        pre.append(items[j][1])
                    j -= 1
                post = []
                j = labels[it.target]
                while j < len(items) and len(post) < self.WINDOW:
                    if items[j][0] == "i":
                        post.append(items[j][1])
                        if items[j][1].mn in ("s_endpgm", "s_branch"):
                            break
                    j += 1
                req = 0
                dpost = 0
                for c in post:
                    dist = dpost
                    for p in pre:
                        n = need(p, c)
                        if n > dist:
                            req = max(req, n - dist)
                        dist += p.ws
                        if dist >= self.WINDOW:
                            break
                    dpost += c.ws
                    if dpost >= self.WINDOW:
                        break
                if req > 0:
                    items.insert(i, ("i", Ins(f"s_nop {min(req, 16) - 1}")))
                    changed = True
                    break
        lines = []
        for k, it in items:
            if k == "i":
                lines.append("    " + it.text)
            elif k == "l":
                lines.append(it + ":")
            else:
                lines.append(it)
        return "\n".join(lines) + "\n"

    def max_regs(self):
        mv = ms = -1
        for k, it in self.items:
            if k == "i":
                for r in it.dst + it.src:
                    if r[0] == "v":
                        mv = max(mv, r[1])
                    elif r[0] == "s":
                        ms = max(ms, r[1])
        return mv + 1, ms + 1


def vr(a, n=1):
    return f"v{a}" if n == 1 else f"v[{a}:{a + n - 1}]"


def sr(a, n=1):
    return f"s{a}" if n == 1 else f"s[{a}:{a + n - 1}]"
```

```python
import struct
from asmlib import Asm, vr, sr
from layout import *


def f32(x):
    return "0x%08x" % struct.unpack("<I", struct.pack("<f", x))[0]


def load_ptrs(a):
    a("""
    s_load_dwordx16 s[16:31], s[0:1], 0
    s_load_dwordx8 s[32:39], s[0:1], 64
    s_load_dwordx2 s[40:41], s[0:1], 96
    """)


P = dict(x=16, wqkv=18, wo=20, bx=22, w_in=24, w_sp=26, b_sp=28, w_out=30, c=32, w_mod=34, out=36, dbg=38, ws=40)


def srd(a, d, ptr, nbytes):
    a(f"""
    s_mov_b32 s{d}, s{P[ptr]}
    s_mov_b32 s{d+1}, s{P[ptr]+1}
    s_mov_b32 s{d+2}, {nbytes}
    s_mov_b32 s{d+3}, 0x00020000
    """)


N_R1, N_R2, N_LN, N_WO, N_WOUT = 160, 160, 64, 60, 81
K0_GRID = N_R1 + N_R2 + N_LN + N_WO + N_WOUT
K0_LDS = 8192


def gen_k0(a: Asm, name):
    L = lambda s: f"{name}_{s}"
    sWS, sSRC, sMOD, sC = 8, 12, 44, 48
    s_kb, s_nb, s_w, s_colA, s_colB, s_rowB, s_ncols, s_dst, s_KS, s_mode = 52, 53, 54, 55, 56, 57, 58, 59, 60, 61
    s_ks, s_ch, s_base, s_h, s_q, s_t, s_t2, s_f, s_pb, s_pc = 62, 63, 64, 65, 66, 67, 68, 69, 70, 71
    s_save = 72
    a(f"""
    s_cmp_ge_u32 s2, {K0_GRID}
    s_cbranch_scc1 {L('end')}
    """)
    load_ptrs(a)
    a(f"""
    v_lshrrev_b32 v1, 6, v0
    v_and_b32 v2, 63, v0
    v_readfirstlane_b32 s{s_w}, v1
    s_waitcnt lgkmcnt(0)
    """)
    srd(a, sWS, "ws", WS_SIZE)
    a(f"""
    s_cmp_ge_u32 s2, {N_R1 + N_R2}
    s_cbranch_scc1 {L('not_gemv')}
    """)
    srd(a, sMOD, "w_mod", 640 * 3840 * 2)
    srd(a, sC, "c", 1280)
    a(f"""
    s_cmp_ge_u32 s2, {N_R1}
    s_cselect_b32 s{s_mode}, 1, 0
    s_cselect_b32 s{s_t}, {N_R1}, 0
    s_sub_u32 s{s_t}, s2, s{s_t}
    s_and_b32 s{s_t2}, s{s_t}, 7
    s_mul_i32 s{s_t2}, s{s_t2}, 20
    s_lshr_b32 s{s_t}, s{s_t}, 3
    s_add_u32 s{s_t}, s{s_t}, s{s_t2}
    s_lshr_b32 s{s_kb}, s{s_t}, 3
    s_and_b32 s{s_nb}, s{s_t}, 7
    s_cmp_eq_u32 s{s_mode}, 0
    s_cbranch_scc0 {L('r2')}
    """)
    srd(a, sSRC, "wqkv", 640 * 1920 * 2)
    a(f"""
    s_mov_b32 s{s_colA}, 0
    s_mov_b32 s{s_colB}, 640
    s_mov_b32 s{s_rowB}, 3840
    s_mov_b32 s{s_ncols}, 1920
    s_mov_b32 s{s_dst}, {WS['WQKV']}
    s_mov_b32 s{s_pb}, {WS['PBQ']}
    s_mov_b32 s{s_pc}, {WS['PBQ']}
    s_branch {L('gemv')}
    {L('r2')}:
    """)
    srd(a, sSRC, "w_in", 640 * 1728 * 2)
    a(f"""
    s_mov_b32 s{s_colA}, 1920
    s_mov_b32 s{s_colB}, 2560
    s_mov_b32 s{s_rowB}, 3456
    s_mov_b32 s{s_ncols}, 1728
    s_mov_b32 s{s_dst}, {WS['WIN']}
    s_mov_b32 s{s_pb}, {WS['PBI']}
    s_mov_b32 s{s_pc}, {WS['PCS']}
    s_cmp_eq_u32 s{s_nb}, 7
    s_cbranch_scc0 {L('gemv')}
    s_mov_b32 s{s_colA}, 1280
    s_mov_b32 s{s_colB}, 3200
    s_mov_b32 s{s_mode}, 2
    {L('gemv')}:
    s_mov_b32 s{s_KS}, 40
    s_lshl_b32 s{s_t}, s{s_kb}, 5
    s_add_u32 s{s_colA}, s{s_colA}, s{s_t}
    s_add_u32 s{s_colB}, s{s_colB}, s{s_t}
    v_lshrrev_b32 v3, 2, v0
    v_and_b32 v4, 3, v0
    v_lshlrev_b32 v5, 1, v3
    v_mul_u32_u24 v6, 7680, v3
    v_lshl_add_u32 v6, v4, 4, v6
    """)
    vC, vS1, vWM, vW, vAcc = 16, 26, 36, 116, 132
    for j in range(10):
        a(f"buffer_load_ushort v{vC+j}, v5, s[{sC}:{sC+3}], 0 offen offset:{j*128}")
    a(f"""
    s_lshl_b32 s{s_t}, s{s_colA}, 1
    s_lshl_b32 s{s_t2}, s{s_colB}, 1
    """)
    for j in range(10):
        a(f"buffer_load_dwordx4 {vr(vWM+8*j,4)}, v6, s[{sMOD}:{sMOD+3}], s{s_t} offen")
        a(f"buffer_load_dwordx4 {vr(vWM+8*j+4,4)}, v6, s[{sMOD}:{sMOD+3}], s{s_t2} offen")
        if j < 9:
            a(f"s_add_u32 s{s_t}, s{s_t}, {64*7680}")
            a(f"s_add_u32 s{s_t2}, s{s_t2}, {64*7680}")

    def w_setup_and_load(perm=False):
        a(f"""
        s_lshr_b32 s{s_ch}, s{s_w}, 1
        s_lshl_b32 s{s_t}, s{s_nb}, 8
        s_lshl_b32 s{s_t2}, s{s_ch}, 7
        s_add_u32 s{s_t}, s{s_t}, s{s_t2}
        v_lshl_add_u32 v8, v2, 1, s{s_t}
        v_lshlrev_b32 v7, 1, v8
        """)
        if perm:
            a(f"""
            s_cmp_eq_u32 s{s_mode}, 0
            s_cbranch_scc0 {L('noperm')}
            s_lshr_b32 s{s_t}, s{s_t}, 7
            s_cmp_ge_u32 s{s_t}, 10
            s_cbranch_scc1 {L('noperm')}
            s_cmp_ge_u32 s{s_t}, 5
            s_cselect_b32 s{s_t2}, 640, 0
            s_cselect_b32 s{s_f}, 5, 0
            s_sub_u32 s{s_t}, s{s_t}, s{s_f}
            s_cmp_eq_u32 s{s_t}, 4
            s_cbranch_scc1 {L('perm2')}
            s_mul_i32 s{s_t}, s{s_t}, 160
            s_add_u32 s{s_t2}, s{s_t2}, s{s_t}
            v_lshrrev_b32 v9, 3, v2
            v_and_b32 v10, 7, v2
            s_branch {L('perm3')}
            {L('perm2')}:
            s_add_u32 s{s_t2}, s{s_t2}, 16
            v_lshrrev_b32 v9, 1, v2
            v_and_b32 v10, 1, v2
            {L('perm3')}:
            v_mul_u32_u24 v9, 20, v9
            v_lshl_add_u32 v9, v10, 1, v9
            v_add_lshl_u32 v7, v9, s{s_t2}, 1
            {L('noperm')}:
            """)
        a(f"""
        s_mul_i32 s{s_base}, s{s_base}, s{s_rowB}
        s_mul_i32 s{s_h}, s{s_h}, s{s_rowB}
        s_mul_i32 s{s_q}, s{s_q}, s{s_rowB}
        """)
        for h in range(2):
            for q2 in range(2):
                a(f"s_mov_b32 s{s_t}, s{s_base}")
                if h:
                    a(f"s_add_u32 s{s_t}, s{s_t}, s{s_h}")
                if q2:
                    a(f"s_add_u32 s{s_t}, s{s_t}, s{s_q}")
                for r in range(4):
                    j = 8 * h + 4 * q2 + r
                    a(f"buffer_load_dword v{vW+j}, v7, s[{sSRC}:{sSRC+3}], s{s_t} offen")
                    if r < 3:
                        a(f"s_add_u32 s{s_t}, s{s_t}, s{s_rowB}")

    def w_store(vP):
        a(f"""
        v_lshrrev_b32 v9, 4, v2
        s_lshl_b32 s{s_t}, s{s_KS}, 10
        v_mul_lo_u32 v9, v9, s{s_t}
        v_and_b32 v10, 15, v2
        v_lshl_add_u32 v9, v10, 5, v9
        s_lshl_b32 s{s_t}, s{s_nb}, 3
        s_lshl_b32 s{s_t2}, s{s_ch}, 2
        s_add_u32 s{s_t}, s{s_t}, s{s_t2}
        s_mul_i32 s{s_t}, s{s_t}, s{s_KS}
        s_add_u32 s{s_t}, s{s_t}, s{s_ks}
        s_lshl_b32 s{s_t}, s{s_t}, 10
        s_add_u32 s{s_t}, s{s_t}, s{s_dst}
        """)
        for c in range(2):
            for h in range(2):
                a(f"buffer_store_dwordx4 {vr(vP+8*c+4*h,4)}, v9, s[{sWS}:{sWS+3}], s{s_t} offen offset:{c*16+h*512}")

    a(f"""
    s_and_b32 s{s_t}, s{s_w}, 1
    s_lshl_b32 s{s_ks}, s{s_kb}, 1
    s_add_u32 s{s_ks}, s{s_ks}, s{s_t}
    s_lshl_b32 s{s_base}, s{s_ks}, 4
    s_mov_b32 s{s_h}, 4
    s_mov_b32 s{s_q}, 8
    """)
    w_setup_and_load(True)
    for i in range(16):
        a(f"v_mov_b32 v{vAcc+i}, 0")
    a("s_waitcnt vmcnt(36)")
    for j in range(10):
        a(f"v_lshlrev_b32 v{vC+j}, 16, v{vC+j}")
    for j in range(10):
        a(f"v_mul_f32 v{vS1+j}, {f32(-1.4426950408889634)}, v{vC+j}")
    for j in range(10):
        a(f"v_exp_f32 v{vS1+j}, v{vS1+j}")
    for j in range(10):
        a(f"v_add_f32 v{vS1+j}, 1.0, v{vS1+j}")
    for j in range(10):
        a(f"v_rcp_f32 v{vS1+j}, v{vS1+j}")
    for j in range(10):
        a(f"v_mul_f32 v{vC+j}, v{vC+j}, v{vS1+j}")
    for j in range(10):
        a(f"v_cvt_pk_bf16_f32 v{vC+j}, v{vC+j}, 0")
    for j in range(10):
        a(f"v_lshlrev_b32 v{vS1+j}, 16, v{vC+j}")
    for j in range(10):
        a(f"s_waitcnt vmcnt({16 + 2*(9-j)})")
        for sl in range(2):
            for d in range(4):
                w = vWM + 8 * j + 4 * sl + d
                a(f"v_dot2_f32_bf16 v{vAcc+8*sl+2*d}, v{w}, v{vC+j}, v{vAcc+8*sl+2*d}")
                a(f"v_dot2_f32_bf16 v{vAcc+8*sl+2*d+1}, v{w}, v{vS1+j}, v{vAcc+8*sl+2*d+1}")
    for sh in (4, 8):
        for i in range(16):
            a(f"v_add_f32_dpp v{vAcc+i}, v{vAcc+i}, v{vAcc+i} row_shr:{sh} row_mask:0xf bank_mask:0xf bound_ctrl:0")
    a(f"""
    v_lshrrev_b32 v3, 4, v0
    v_lshlrev_b32 v3, 8, v3
    v_lshl_add_u32 v3, v4, 5, v3
    v_and_b32 v5, 12, v0
    v_cmp_eq_u32 vcc, 12, v5
    s_and_saveexec_b64 s[{s_save}:{s_save+1}], vcc
    ds_write_b128 v3, {vr(vAcc,4)}
    ds_write_b128 v3, {vr(vAcc+4,4)} offset:16
    ds_write_b128 v3, {vr(vAcc+8,4)} offset:128
    ds_write_b128 v3, {vr(vAcc+12,4)} offset:144
    s_mov_b64 exec, s[{s_save}:{s_save+1}]
    s_waitcnt lgkmcnt(0)
    s_barrier
    s_cmp_eq_u32 s{s_w}, 0
    s_cbranch_scc0 {L('skipsum')}
    v_lshlrev_b32 v3, 2, v0
    """)
    for i in range(16):
        a(f"ds_read_b32 v{vWM+i}, v3 offset:{i*256}")
    a("s_waitcnt lgkmcnt(0)")
    for st in (8, 4, 2, 1):
        for i in range(st):
            a(f"v_add_f32 v{vWM+i}, v{vWM+i}, v{vWM+i+st}")
    a(f"""
    v_cvt_pk_bf16_f32 v5, v{vWM}, v{vWM}
    v_lshlrev_b32 v5, 16, v5
    s_cmp_eq_u32 s{s_mode}, 2
    s_cbranch_scc0 {L('notmod')}
    v_and_b32 v6, 31, v0
    v_mov_b32 v9, s{s_colA}
    v_mov_b32 v10, s{s_colB}
    v_cmp_gt_u32 vcc, 32, v0
    v_cndmask_b32 v9, v10, v9, vcc
    v_add_lshl_u32 v6, v6, v9, 2
    s_mov_b32 s{s_t}, {WS['MOD']}
    buffer_store_dword v5, v6, s[{sWS}:{sWS+3}], s{s_t} offen
    {L('notmod')}:
    v_add_f32 v6, 1.0, v5
    v_cvt_pk_bf16_f32 v6, v6, v6
    v_lshlrev_b32 v6, 16, v6
    v_cmp_gt_u32 vcc, 32, v0
    v_cndmask_b32 v5, v6, v5, vcc
    ds_write_b32 v3, v5 offset:4096
    s_waitcnt lgkmcnt(0)
    {L('skipsum')}:
    s_cmp_eq_u32 s{s_mode}, 2
    s_cbranch_scc1 {L('end')}
    s_barrier
    """)
    vSh, vSc, vLo, vHi, vP = 36, 52, 68, 84, 100
    a(f"""
    s_and_b32 s{s_t}, s{s_w}, 1
    s_lshl_b32 s{s_t}, s{s_t}, 6
    v_mov_b32 v3, s{s_t}
    """)
    for h in range(2):
        for q2 in range(2):
            j = 8 * h + 4 * q2
            k = 4 * h + 8 * q2
            a(f"ds_read_b128 {vr(vSh+j,4)}, v3 offset:{4096 + k*4}")
            a(f"ds_read_b128 {vr(vSc+j,4)}, v3 offset:{4096 + 128 + k*4}")
    a(f"""
    s_lshl_b32 s{s_t}, s{s_nb}, 1
    s_add_u32 s{s_t}, s{s_t}, s{s_ch}
    s_cmp_lt_u32 s{s_t}, 5
    s_cselect_b32 s{s_f}, {f32(QSCALE)}, 1.0
    s_cmp_eq_u32 s{s_mode}, 0
    s_cselect_b32 s{s_f}, s{s_f}, 1.0
    s_waitcnt vmcnt(0)
    """)
    for j in range(16):
        a(f"v_lshlrev_b32 v{vLo+j}, 16, v{vW+j}")
        a(f"v_and_b32 v{vHi+j}, 0xffff0000, v{vW+j}")
    a("s_waitcnt lgkmcnt(0)")
    for j in range(16):
        a(f"v_mul_f32 v{vSc+j}, s{s_f}, v{vSc+j}")
    a(f"""
    v_mul_f32 v12, v{vSh}, v{vLo}
    v_mul_f32 v13, v{vSh}, v{vHi}
    """)
    for j in range(1, 16):
        a(f"v_fmac_f32 v12, v{vSh+j}, v{vLo+j}")
        a(f"v_fmac_f32 v13, v{vSh+j}, v{vHi+j}")
    for j in range(16):
        a(f"v_mul_f32 v{vLo+j}, v{vSc+j}, v{vLo+j}")
        a(f"v_mul_f32 v{vHi+j}, v{vSc+j}, v{vHi+j}")
    for d in range(8):
        a(f"v_cvt_pk_bf16_f32 v{vP+d}, v{vLo+2*d}, v{vLo+2*d+1}")
        a(f"v_cvt_pk_bf16_f32 v{vP+8+d}, v{vHi+2*d}, v{vHi+2*d+1}")
    a(f"""
    v_mul_f32 v12, s{s_f}, v12
    v_mul_f32 v13, s{s_f}, v13
    v_mov_b32 v14, 0
    v_mov_b32 v15, 0
    v_mov_b32 v11, 0x3f803f80
    """)
    for d in range(8):
        a(f"v_dot2_f32_bf16 v14, v{vP+d}, v11, v14")
        a(f"v_dot2_f32_bf16 v15, v{vP+8+d}, v11, v15")
    a(f"""
    v_cmp_gt_u32 vcc, s{s_ncols}, v8
    s_and_saveexec_b64 s[{s_save}:{s_save+1}], vcc
    s_cbranch_execz {L('nost')}
    """)
    w_store(vP)
    a(f"""
    {L('nost')}:
    s_mov_b64 exec, s[{s_save}:{s_save+1}]
    v_lshlrev_b32 v3, 4, v2
    s_lshl_b32 s{s_t}, s{s_ch}, 10
    v_add_u32 v3, s{s_t}, v3
    s_and_b32 s{s_t}, s{s_w}, 1
    s_cmp_eq_u32 s{s_t}, 1
    s_cbranch_scc0 {L('nowr')}
    ds_write_b128 v3, v[12:15]
    s_waitcnt lgkmcnt(0)
    {L('nowr')}:
    s_barrier
    s_cmp_eq_u32 s{s_t}, 1
    s_cbranch_scc1 {L('end')}
    ds_read_b128 v[4:7], v3
    s_mul_i32 s{s_t}, s{s_kb}, s{s_ncols}
    s_lshl_b32 s{s_t}, s{s_t}, 2
    s_add_u32 s{s_pb}, s{s_pb}, s{s_t}
    s_add_u32 s{s_pc}, s{s_pc}, s{s_t}
    v_lshlrev_b32 v9, 2, v8
    s_waitcnt lgkmcnt(0)
    v_add_f32 v12, v12, v4
    v_add_f32 v13, v13, v5
    v_add_f32 v14, v14, v6
    v_add_f32 v15, v15, v7
    v_cmp_gt_u32 vcc, s{s_ncols}, v8
    s_and_saveexec_b64 s[{s_save}:{s_save+1}], vcc
    s_cbranch_execz {L('end')}
    buffer_store_dwordx2 v[12:13], v9, s[{sWS}:{sWS+3}], s{s_pb} offen
    s_cmp_eq_u32 s{s_mode}, 0
    s_cbranch_scc1 {L('end')}
    buffer_store_dwordx2 v[14:15], v9, s[{sWS}:{sWS+3}], s{s_pc} offen
    s_branch {L('end')}
    """)
    a(f"""
    {L('not_gemv')}:
    s_cmp_lt_u32 s2, {N_R1 + N_R2 + N_LN}
    s_cbranch_scc1 {L('ln')}
    s_mov_b32 s{s_rowB}, 1280
    s_mov_b32 s{s_ncols}, 640
    s_cmp_lt_u32 s2, {N_R1 + N_R2 + N_LN + N_WO}
    s_cbranch_scc0 {L('wout')}
    """)
    srd(a, sSRC, "wo", 640 * 640 * 2)
    a(f"""
    s_sub_u32 s{s_t}, s2, {N_R1 + N_R2 + N_LN}
    s_mul_i32 s{s_kb}, s{s_t}, 171
    s_lshr_b32 s{s_kb}, s{s_kb}, 9
    s_mul_i32 s{s_t2}, s{s_kb}, 3
    s_sub_u32 s{s_nb}, s{s_t}, s{s_t2}
    s_mov_b32 s{s_KS}, 40
    s_mov_b32 s{s_dst}, {WS['WO']}
    s_and_b32 s{s_t}, s{s_w}, 1
    s_lshl_b32 s{s_ks}, s{s_kb}, 1
    s_add_u32 s{s_ks}, s{s_ks}, s{s_t}
    s_mul_i32 s{s_base}, s{s_ks}, 20
    s_mov_b32 s{s_h}, 4
    s_mov_b32 s{s_q}, 8
    s_cmp_lt_u32 s{s_ks}, 32
    s_cbranch_scc1 {L('r4')}
    s_sub_u32 s{s_t}, s{s_ks}, 32
    s_mul_i32 s{s_base}, s{s_t}, 80
    s_add_u32 s{s_base}, s{s_base}, 16
    s_mov_b32 s{s_h}, 20
    s_mov_b32 s{s_q}, 40
    s_branch {L('r4')}
    {L('wout')}:
    """)
    srd(a, sSRC, "w_out", 864 * 640 * 2)
    a(f"""
    s_sub_u32 s{s_t}, s2, {N_R1 + N_R2 + N_LN + N_WO}
    s_mul_i32 s{s_kb}, s{s_t}, 171
    s_lshr_b32 s{s_kb}, s{s_kb}, 9
    s_mul_i32 s{s_t2}, s{s_kb}, 3
    s_sub_u32 s{s_nb}, s{s_t}, s{s_t2}
    s_mov_b32 s{s_KS}, 54
    s_mov_b32 s{s_dst}, {WS['WOUT']}
    s_and_b32 s{s_t}, s{s_w}, 1
    s_lshl_b32 s{s_ks}, s{s_kb}, 1
    s_add_u32 s{s_ks}, s{s_ks}, s{s_t}
    s_lshl_b32 s{s_base}, s{s_ks}, 4
    s_mov_b32 s{s_h}, 4
    s_mov_b32 s{s_q}, 8
    {L('r4')}:
    """)
    w_setup_and_load()
    a(f"""
    s_mov_b32 s{s_pb}, 0x05040100
    s_mov_b32 s{s_pc}, 0x07060302
    s_waitcnt vmcnt(0)
    """)
    vP = 100
    for d in range(8):
        a(f"v_perm_b32 v{vP+d}, v{vW+2*d+1}, v{vW+2*d}, s{s_pb}")
        a(f"v_perm_b32 v{vP+8+d}, v{vW+2*d+1}, v{vW+2*d}, s{s_pc}")
    a(f"""
    v_cmp_gt_u32 vcc, s{s_ncols}, v8
    s_and_saveexec_b64 s[{s_save}:{s_save+1}], vcc
    s_cbranch_execz {L('end')}
    """)
    w_store(vP)
    a(f"s_branch {L('end')}")
    a(f"{L('ln')}:")
    srd(a, sSRC, "x", S * D * 2)
    vX, vO = 16, 56
    a(f"""
    s_sub_u32 s{s_kb}, s2, {N_R1 + N_R2}
    v_lshrrev_b32 v3, 3, v0
    v_and_b32 v4, 7, v0
    v_mul_u32_u24 v5, 1280, v3
    v_lshl_add_u32 v5, v4, 5, v5
    s_mul_i32 s{s_t}, s{s_kb}, {32*1280}
    """)
    for it in range(5):
        a(f"buffer_load_dwordx4 {vr(vX+8*it,4)}, v5, s[{sSRC}:{sSRC+3}], s{s_t} offen offset:{it*256}")
        a(f"buffer_load_dwordx4 {vr(vX+8*it+4,4)}, v5, s[{sSRC}:{sSRC+3}], s{s_t} offen offset:{it*256+16}")
    a(f"""
    v_mov_b32 v12, -1
    v_mov_b32 v13, -1
    v_mov_b32 v14, -1
    v_mov_b32 v15, -1
    v_lshlrev_b32 v6, 4, v0
    s_lshl_b32 s{s_t2}, s{s_kb}, 12
    s_add_u32 s{s_t2}, s{s_t2}, {WS['ST2']}
    buffer_store_dwordx4 v[12:15], v6, s[{sWS}:{sWS+3}], s{s_t2} offen
    v_mov_b32 v11, 0x3f803f80
    v_mov_b32 v8, 0
    v_mov_b32 v9, 0
    v_mov_b32 v6, 0
    v_mov_b32 v7, 0
    s_waitcnt vmcnt(1)
    """)
    for d in range(0, 40, 2):
        a(f"v_dot2_f32_bf16 v8, v{vX+d}, v11, v8")
        a(f"v_dot2_f32_bf16 v9, v{vX+d}, v{vX+d}, v9")
        a(f"v_dot2_f32_bf16 v6, v{vX+d+1}, v11, v6")
        a(f"v_dot2_f32_bf16 v7, v{vX+d+1}, v{vX+d+1}, v7")
    a("""
    v_add_f32 v8, v8, v6
    v_add_f32 v9, v9, v7
    """)
    for dpp in ("quad_perm:[1,0,3,2]", "quad_perm:[2,3,0,1]", "row_half_mirror"):
        a(f"v_add_f32_dpp v8, v8, v8 {dpp} row_mask:0xf bank_mask:0xf")
        a(f"v_add_f32_dpp v9, v9, v9 {dpp} row_mask:0xf bank_mask:0xf")
    a(f"""
    v_mul_f32 v8, {f32(1.0/640)}, v8
    v_mul_f32 v9, {f32(1.0/640)}, v9
    v_fma_f32 v9, -v8, v8, v9
    v_max_f32 v9, 0, v9
    v_cvt_pk_bf16_f32 v9, v9, v8
    v_and_b32 v8, 0xffff0000, v9
    v_lshlrev_b32 v9, 16, v9
    v_add_f32 v9, {f32(1e-5)}, v9
    v_cvt_pk_bf16_f32 v9, v9, v9
    v_lshlrev_b32 v9, 16, v9
    v_sqrt_f32 v9, v9
    v_cvt_pk_bf16_f32 v9, v9, v9
    v_lshlrev_b32 v9, 16, v9
    v_rcp_f32 v9, v9
    v_mul_f32 v8, v8, v9
    v_lshlrev_b32 v5, 10, v4
    v_lshl_add_u32 v5, v3, 4, v5
    s_mul_i32 s{s_t}, s{s_kb}, {40*1024}
    s_add_u32 s{s_t}, s{s_t}, {WS['XH']}
    """)
    pos = {0: 0, 1: 1, 4: 2, 5: 3, 2: 4, 3: 5, 6: 6, 7: 7}
    for it in range(5):
        for d in range(8):
            x = vX + 8 * it + d
            a(f"""
            v_lshlrev_b32 v12, 16, v{x}
            v_and_b32 v13, 0xffff0000, v{x}
            v_fma_f32 v12, v12, v9, -v8
            v_fma_f32 v13, v13, v9, -v8
            v_cvt_pk_bf16_f32 v{vO+8*it+pos[d]}, v12, v13
            """)
        a(f"buffer_store_dwordx4 {vr(vO+8*it,4)}, v5, s[{sWS}:{sWS+3}], s{s_t} offen")
        a(f"buffer_store_dwordx4 {vr(vO+8*it+4,4)}, v5, s[{sWS}:{sWS+3}], s{s_t} offen offset:512")
        if it < 4:
            a(f"s_add_u32 s{s_t}, s{s_t}, 8192")
    a(f"""
    {L('end')}:
    s_endpgm
    """)
```

```python
S, D, H, DH = 2048, 640, 32, 20
F, FH = 1728, 864
NQKV = 1920

KA = dict(x=0, wqkv=8, wo=16, bx=24, w_in=32, w_sp=40, b_sp=48, w_out=56, c=64, w_mod=72, out=80, dbg=88, ws=96)

WS_SIZE = 268435456

_off = 0
WS = {}


def _alloc(name, nbytes):
    global _off
    WS[name] = _off
    _off += (nbytes + 4095) // 4096 * 4096


_alloc("MOD", 3840 * 4)
_alloc("PBQ", 20 * NQKV * 4)
_alloc("PCS", 20 * F * 4 + 4096)
_alloc("PBI", 20 * F * 4 + 4096)
_alloc("ST1", S * 32 * 8)
_alloc("ST2", S * 16 * 8)
_alloc("XH", 64 * 40 * 1024)
_alloc("WQKV", 60 * 40 * 1024)
_alloc("WIN", 56 * 40 * 1024)
_alloc("WO", 20 * 40 * 1024)
_alloc("WOUT", 20 * 54 * 1024 + 65536)
_alloc("QF1", H * 64 * 1024)
_alloc("KF1", H * 64 * 1024)
_alloc("QF2", 16 * 64 * 512)
_alloc("KF2", 16 * 64 * 512)
_alloc("VI", H * 64 * 1280 + 4096)
_alloc("O", 64 * 40 * 1024)
_alloc("X1", 64 * 40 * 1024)
_alloc("Z1", 64 * 54 * 1024 + 65536)
_alloc("Z2N", 28 * S * 64)
_alloc("U", 64 * 54 * 1024 + 65536)
_alloc("PROF", 8 * 1024 * 256)
WS_USED = _off

QSCALE = (DH ** -0.5) * 1.4426950408889634


def qk_perm():
    src = []
    for c in range(640):
        at, r = divmod(c, 32)
        if at < 16:
            src.append(40 * at + 20 * (r >> 4) + (r & 15))
        else:
            src.append(160 * (at - 16) + 20 * (r >> 2) + 16 + (r & 3))
    return src
```

```python
import sys, os, importlib
sys.path.insert(0, os.path.dirname(__file__))
from asmlib import Asm
from layout import *

NAME = "adaLN_cond__softmax_full_mha__mixer_gmlp__prompt"
REF = f"cdna_kernels/{NAME}.s.ref"


def add_prof(a, kidx):
    from asmlib import Ins
    pre = Asm()
    pre("""
    s_memrealtime s[92:93]
    s_memtime s[94:95]
    v_readfirstlane_b32 s91, v0
    s_mov_b32 s90, s2
    """)
    post = Asm()
    post(f"""
    s_mov_b64 exec, 1
    s_load_dwordx2 s[84:85], s[0:1], 96
    s_memrealtime s[96:97]
    s_memtime s[98:99]
    s_waitcnt vmcnt(0) lgkmcnt(0)
    s_memrealtime s[96:97]
    s_memtime s[98:99]
    s_mov_b32 s86, {WS_SIZE}
    s_mov_b32 s87, 0x00020000
    s_lshr_b32 s91, s91, 2
    s_lshl_b32 s90, s90, 8
    s_add_u32 s90, s90, s91
    s_add_u32 s90, s90, {WS['PROF'] + kidx * 1024 * 256}
    s_waitcnt lgkmcnt(0)
    s_sub_u32 s98, s98, s94
    v_mov_b32 v0, s92
    v_mov_b32 v1, s96
    v_mov_b32 v2, s98
    v_mov_b32 v3, s88
    v_mov_b32 v4, 0
    buffer_store_dwordx4 v[0:3], v4, s[84:87], s90 offen
    """)
    items = list(pre.items)
    for it in a.items:
        if it[0] == "i" and it[1].mn == "s_endpgm":
            items += post.items
        items.append(it)
    a.items = items


def build(kernels, out_path, launches=None, prof=False):
    head = []
    for line in open(REF).read().split("\n"):
        if line.startswith("; @launch") or line.startswith("; Override") or line.startswith("; grid=ceil"):
            continue
        if not line.startswith(";"):
            break
        head.append(line)
    if launches is None:
        launches = [k[0] for k in kernels]
    km = {k[0]: k for k in kernels}
    for l in launches:
        label, fn, grid, block, lds = km[l]
        head.append(f"; @launch kernel={label} grid=({grid},1,1) block=({block},1,1) lds={lds}")
    txt = "\n".join(head) + '\n.amdgcn_target "amdgcn-amd-amdhsa--gfx950"\n.text\n'
    desc = '.section .rodata,"a"\n'
    for label, fn, grid, block, lds in kernels:
        a = Asm()
        fn(a, label)
        if prof:
            add_prof(a, [k[0] for k in kernels].index(label))
        body = a.finalize()
        nv, ns = a.max_regs()
        nv = max(nv, 8)
        acc = (nv + 3) // 4 * 4
        na = a.max_acc() if hasattr(a, "max_acc") else 0
        tot = acc + na if na else nv
        txt += f".globl {label}\n.p2align 8\n.type {label},@function\n{label}:\n{body}"
        desc += f""".p2align 6
.amdhsa_kernel {label}
  .amdhsa_next_free_vgpr {tot}
  .amdhsa_next_free_sgpr 102
  .amdhsa_accum_offset {acc}
  .amdhsa_group_segment_fixed_size 0
  .amdhsa_kernarg_size 104
  .amdhsa_user_sgpr_count 2
  .amdhsa_user_sgpr_kernarg_segment_ptr 1
  .amdhsa_system_sgpr_workgroup_id_x 1
.end_amdhsa_kernel
"""
        print(f"{label}: vgpr={nv} agpr={na} sgpr={ns} lines={body.count(chr(10))}", file=sys.stderr)
    open(out_path, "w").write(txt + desc)


def kernel_list():
    import k0
    ks = [("k0_kernel", k0.gen_k0, k0.K0_GRID, 256, k0.K0_LDS)]
    for mod, fn in (("k1", "gen_k1"), ("k2", "gen_k2"), ("k3", "gen_k3"), ("k4", "gen_k4"), ("k5", "gen_k5"), ("k6", "gen_k6")):
        if not os.path.exists(os.path.join(os.path.dirname(__file__), mod + ".py")):
            break
        m = importlib.import_module(mod)
        ks.append((mod + "_kernel", getattr(m, fn), m.GRID, m.BLOCK, m.LDS))
    return ks


if __name__ == "__main__":
    out = sys.argv[1] if len(sys.argv) > 1 else f"cdna_kernels/{NAME}.s"
    build(kernel_list(), out, prof="--prof" in sys.argv)
```

```python
import re

TRANS = ("v_exp_f32", "v_log_f32", "v_rcp_f32", "v_rsq_f32", "v_sqrt_f32", "v_sin_f32", "v_cos_f32",
         "v_exp_f16", "v_rcp_iflag_f32")

_reg_re = re.compile(r"^(-|\|)?(abs\()?([vsa])(\d+)\)?\|?$")
_rng_re = re.compile(r"^(-)?([vsa])\[(\d+):(\d+)\]$")


def parse_operand(tok):
    tok = tok.strip()
    m = _reg_re.match(tok)
    if m:
        return [(m.group(3), int(m.group(4)))]
    m = _rng_re.match(tok)
    if m:
        return [(m.group(2), i) for i in range(int(m.group(3)), int(m.group(4)) + 1)]
    if tok in ("vcc", "vcc_lo", "vcc_hi"):
        return [("vcc", 0)]
    if tok in ("exec", "exec_lo", "exec_hi"):
        return [("exec", 0)]
    if tok == "m0":
        return [("m0", 0)]
    return []


def split_ops(s):
    ops, depth, cur = [], 0, ""
    for ch in s:
        if ch in "[(":
            depth += 1
        elif ch in "])":
            depth -= 1
        if ch == "," and depth == 0:
            ops.append(cur)
            cur = ""
        else:
            cur += ch
    if cur.strip():
        ops.append(cur)
    return [o.strip() for o in ops]


class Ins:
    __slots__ = ("text", "mn", "dst", "src", "kind", "passes", "srcc", "srcab", "mods", "ws", "target", "wide_store")

    def __init__(self, text):
        self.text = text
        t = text.split(";")[0].strip()
        parts = t.split(None, 1)
        self.mn = parts[0]
        rest = parts[1] if len(parts) > 1 else ""
        ops = split_ops(rest)
        self.mods = ""
        if ops:
            last = ops[-1].split(None, 1)
            ops[-1] = last[0]
            if len(last) > 1:
                self.mods = last[1]
        mn = self.mn
        regs = [parse_operand(o) for o in ops]
        self.dst, self.src = [], []
        self.kind = "other"
        self.passes = 0
        self.srcc, self.srcab = [], []
        self.ws = 1
        self.target = None
        self.wide_store = []
        if mn == "s_nop":
            self.kind = "nop"
            self.ws = int(ops[0], 0) + 1
        elif mn.startswith("v_mfma"):
            self.kind = "mfma"
            self.dst = regs[0]
            self.srcab = regs[1] + regs[2]
            self.srcc = regs[3]
            self.src = self.srcab + self.srcc
            if "32x32" in mn:
                self.passes = 16 if mn.endswith("_f32") and "x2_f32" in mn else 8
            elif "16x16" in mn:
                self.passes = 8 if "x4_f32" in mn else 4
            else:
                self.passes = 2
        elif mn.startswith("v_"):
            self.kind = "valu"
            if mn.startswith("v_cmp"):
                self.dst = regs[0]
                self.src = sum(regs[1:], [])
                assert not mn.startswith("v_cmpx"), "v_cmpx not supported by hazard pass"
            elif "_swap" in mn:
                self.dst = regs[0] + regs[1]
                self.src = regs[0] + regs[1]
            elif mn.startswith(("v_add_co", "v_sub_co", "v_subrev_co", "v_addc_co", "v_subb_co")):
                self.dst = regs[0] + regs[1]
                self.src = sum(regs[2:], [])
            elif mn.startswith(("v_fmac", "v_dot2c", "v_pk_fmac", "v_writelane")):
                self.dst = regs[0]
                self.src = sum(regs, [])
            elif mn == "v_nop":
                pass
            else:
                self.dst = regs[0]
                self.src = sum(regs[1:], [])
            if "dpp" in mn or "row_" in self.mods or "quad_perm" in self.mods:
                self.src = self.src + self.dst
        elif mn.startswith("ds_"):
            self.kind = "ds"
            if mn.startswith(("ds_read", "ds_bpermute", "ds_permute", "ds_swizzle")) or "_rtn" in mn:
                self.dst = regs[0]
                self.src = sum(regs[1:], [])
            else:
                self.src = sum(regs, [])
        elif mn.startswith(("buffer_", "global_", "flat_")):
            self.kind = "vmem"
            lds = re.search(r"\blds\b", self.mods) is not None or "load_lds" in mn
            if mn in ("buffer_wbl2", "buffer_inv"):
                pass
            elif "load" in mn and not lds:
                self.dst = regs[0]
                self.src = sum(regs[1:], [])
                if "d16" in mn:
                    self.src = self.src + self.dst
            elif "load" in mn:
                self.src = sum(regs, []) + [("m0", 0)]
                self.kind = "vmem_lds"
            elif "atomic" in mn:
                self.src = sum(regs, [])
                if "sc0" in self.mods:
                    self.dst = regs[0]
            else:
                self.src = sum(regs, [])
                if "x3" in mn or "x4" in mn:
                    self.wide_store = regs[0] if mn.startswith("buffer_") else regs[1]
        elif mn.startswith("s_"):
            self.kind = "salu"
            if mn.startswith(("s_branch", "s_cbranch")):
                self.kind = "branch"
                self.target = ops[0]
            elif mn.startswith(("s_cmp", "s_waitcnt", "s_barrier", "s_endpgm", "s_sleep", "s_setprio", "s_bitcmp")):
                self.src = sum(regs, [])
            elif mn.startswith(("s_load", "s_buffer_load", "s_memtime", "s_memrealtime", "s_atomic")):
                self.kind = "smem"
                self.dst = regs[0]
                self.src = sum(regs[1:], [])
            else:
                self.dst = regs[0] if regs else []
                self.src = sum(regs[1:], [])
                if "saveexec" in mn:
                    self.dst = self.dst + [("exec", 0)]

    @property
    def is_trans(self):
        return self.mn.replace("_e32", "").replace("_e64", "") in TRANS

    @property
    def is_dot(self):
        return self.mn.startswith("v_dot")


MF_AB = {2: 5, 4: 8, 8: 12, 16: 20}
MF_OVL = {2: 4, 4: 6, 8: 10, 16: 18}
MF_WAR = {2: 1, 4: 3, 8: 7, 16: 15}


def need(p, c):
    n = 0
    pd, cs, cd = set(p.dst), set(c.src), set(c.dst)
    if p.kind == "valu":
        vd = {r for r in pd if r[0] in "va"}
        sd = {r for r in pd if r[0] in ("s", "vcc")}
        if c.kind == "mfma" and vd & cs:
            n = max(n, 2)
        if c.kind == "valu":
            if p.is_trans and not c.is_trans and (vd & (cs | cd)):
                n = max(n, 1)
            if p.is_trans and (vd & cs):
                n = max(n, 1)
            if sd & cs:
                n = max(n, 4 if c.mn.startswith(("v_readlane", "v_writelane")) else 2)
            if c.mn.startswith(("v_readfirstlane", "v_readlane")) and vd & cs:
                n = max(n, 1)
            if ("dpp" in c.mn or "row_" in c.mods or "quad_perm" in c.mods or "permlane" in c.mn) and vd & cs:
                n = max(n, 2)
            if p.is_dot and (vd & (cs | cd)):
                same_c = (p.mn == c.mn) and not (vd & set(c.src[:-len(c.dst)] if not c.mn.startswith("v_dot2c") else c.src[len(c.dst):]))
                if not same_c:
                    n = max(n, 3)
        if c.kind in ("vmem", "vmem_lds", "ds") and p.is_dot and vd & cs:
            n = max(n, 3)
        if c.kind in ("vmem", "vmem_lds") and sd & cs:
            n = max(n, 5)
        if c.kind in ("vmem", "vmem_lds", "ds") and p.is_trans and vd & cs:
            n = max(n, 1)
        if c.kind in ("salu", "smem", "branch") and sd & cs:
            n = max(n, 1)
    elif p.kind == "mfma":
        if c.kind == "mfma":
            if pd & set(c.srcab):
                n = max(n, MF_AB[p.passes])
            if pd & set(c.srcc):
                if list(p.dst) == list(c.srcc) and p.passes == c.passes:
                    n = max(n, 2 if p.passes == 2 else 0)
                else:
                    n = max(n, MF_OVL[p.passes])
            elif pd & cd:
                n = max(n, MF_OVL[p.passes])
        elif c.kind in ("valu", "vmem", "vmem_lds", "ds"):
            if pd & (cs | cd):
                n = max(n, MF_AB[p.passes])
            if c.kind == "valu" and set(p.srcc) & cd:
                n = max(n, MF_WAR[p.passes])
    elif p.kind == "salu":
        if ("m0", 0) in pd and (c.kind == "vmem_lds" or "addtid" in c.mn):
            n = max(n, 1)
    elif p.kind == "vmem":
        if p.wide_store and set(p.wide_store) & cd:
            n = max(n, 2 if c.kind in ("valu", "mfma") else 1)
    return n


class Asm:
    def __init__(self):
        self.items = []
        self._uid = 0

    def __call__(self, text):
        for line in text.strip("\n").split("\n"):
            s = line.strip()
            if not s:
                continue
            if s.startswith(";") or s.startswith("."):
                self.items.append(("r", line))
            elif s.endswith(":"):
                self.items.append(("l", s[:-1]))
            else:
                self.items.append(("i", Ins(s)))

    prof = False

    def stamp(self, i):
        if self.prof:
            r = (88, 89, 100, 101)[i]
            self(f"""
            s_memtime s[96:97]
            s_waitcnt lgkmcnt(0)
            s_sub_u32 s{r}, s96, s94
            """)

    def label(self, name):
        self.items.append(("l", name))

    def uid(self, prefix="L"):
        self._uid += 1
        return f"{prefix}_{self._uid}"

    def raw(self, text):
        self.items.append(("r", text))

    WINDOW = 24

    def _pad_linear(self, items):
        out = []
        hist = []
        for kind, it in items:
            if kind == "i":
                req = 0
                dist = 0
                for p in reversed(hist):
                    n = need(p, it)
                    if n > dist:
                        req = max(req, n - dist)
                    dist += p.ws
                    if dist >= self.WINDOW:
                        break
                while req > 0:
                    k = min(req, 16)
                    nop = Ins(f"s_nop {k - 1}")
                    out.append(("i", nop))
                    hist.append(nop)
                    req -= k
                out.append((kind, it))
                hist.append(it)
                if it.mn in ("s_endpgm", "s_branch"):
                    hist = []
                hist = hist[-self.WINDOW:]
            else:
                out.append((kind, it))
        return out

    def finalize(self):
        items = self._pad_linear(self.items)
        changed = True
        while changed:
            changed = False
            labels = {it: i for i, (k, it) in enumerate(items) if k == "l"}
            for i, (k, it) in enumerate(items):
                if k != "i" or it.kind != "branch" or it.target not in labels:
                    continue
                pre = []
                j = i
                while j >= 0 and len(pre) < self.WINDOW:
                    if items[j][0] == "i":
                        if j != i and items[j][1].mn in ("s_endpgm", "s_branch"):
                            break
                        pre.append(items[j][1])
                    j -= 1
                post = []
                j = labels[it.target]
                while j < len(items) and len(post) < self.WINDOW:
                    if items[j][0] == "i":
                        post.append(items[j][1])
                        if items[j][1].mn in ("s_endpgm", "s_branch"):
                            break
                    j += 1
                req = 0
                dpost = 0
                for c in post:
                    dist = dpost
                    for p in pre:
                        n = need(p, c)
                        if n > dist:
                            req = max(req, n - dist)
                        dist += p.ws
                        if dist >= self.WINDOW:
                            break
                    dpost += c.ws
                    if dpost >= self.WINDOW:
                        break
                if req > 0:
                    items.insert(i, ("i", Ins(f"s_nop {min(req, 16) - 1}")))
                    changed = True
                    break
        lines = []
        for k, it in items:
            if k == "i":
                lines.append("    " + it.text)
            elif k == "l":
                lines.append(it + ":")
            else:
                lines.append(it)
        return "\n".join(lines) + "\n"

    def max_regs(self):
        mv = ms = -1
        for k, it in self.items:
            if k == "i":
                for r in it.dst + it.src:
                    if r[0] == "v":
                        mv = max(mv, r[1])
                    elif r[0] == "s":
                        ms = max(ms, r[1])
        return mv + 1, ms + 1


def vr(a, n=1):
    return f"v{a}" if n == 1 else f"v[{a}:{a + n - 1}]"


def sr(a, n=1):
    return f"s{a}" if n == 1 else f"s[{a}:{a + n - 1}]"
```

```python
import struct
from asmlib import Asm, vr, sr
from layout import *


def f32(x):
    return "0x%08x" % struct.unpack("<I", struct.pack("<f", x))[0]


def load_ptrs(a):
    a("""
    s_load_dwordx16 s[16:31], s[0:1], 0
    s_load_dwordx8 s[32:39], s[0:1], 64
    s_load_dwordx2 s[40:41], s[0:1], 96
    """)


P = dict(x=16, wqkv=18, wo=20, bx=22, w_in=24, w_sp=26, b_sp=28, w_out=30, c=32, w_mod=34, out=36, dbg=38, ws=40)


def srd(a, d, ptr, nbytes):
    a(f"""
    s_mov_b32 s{d}, s{P[ptr]}
    s_mov_b32 s{d+1}, s{P[ptr]+1}
    s_mov_b32 s{d+2}, {nbytes}
    s_mov_b32 s{d+3}, 0x00020000
    """)


N_R1, N_R2, N_LN, N_WO, N_WOUT = 160, 160, 64, 60, 81
K0_GRID = N_R1 + N_R2 + N_LN + N_WO + N_WOUT
K0_LDS = 8192


def gen_k0(a: Asm, name):
    L = lambda s: f"{name}_{s}"
    sWS, sSRC, sMOD, sC = 8, 12, 44, 48
    s_kb, s_nb, s_w, s_colA, s_colB, s_rowB, s_ncols, s_dst, s_KS, s_mode = 52, 53, 54, 55, 56, 57, 58, 59, 60, 61
    s_ks, s_ch, s_base, s_h, s_q, s_t, s_t2, s_f, s_pb, s_pc = 62, 63, 64, 65, 66, 67, 68, 69, 70, 71
    s_save = 72
    a(f"""
    s_cmp_ge_u32 s2, {K0_GRID}
    s_cbranch_scc1 {L('end')}
    """)
    load_ptrs(a)
    a(f"""
    v_lshrrev_b32 v1, 6, v0
    v_and_b32 v2, 63, v0
    v_readfirstlane_b32 s{s_w}, v1
    s_waitcnt lgkmcnt(0)
    """)
    srd(a, sWS, "ws", WS_SIZE)
    a(f"""
    s_cmp_ge_u32 s2, {N_R1 + N_R2}
    s_cbranch_scc1 {L('not_gemv')}
    """)
    srd(a, sMOD, "w_mod", 640 * 3840 * 2)
    srd(a, sC, "c", 1280)
    a(f"""
    s_cmp_ge_u32 s2, {N_R1}
    s_cselect_b32 s{s_mode}, 1, 0
    s_cselect_b32 s{s_t}, {N_R1}, 0
    s_sub_u32 s{s_t}, s2, s{s_t}
    s_and_b32 s{s_t2}, s{s_t}, 7
    s_mul_i32 s{s_t2}, s{s_t2}, 20
    s_lshr_b32 s{s_t}, s{s_t}, 3
    s_add_u32 s{s_t}, s{s_t}, s{s_t2}
    s_lshr_b32 s{s_kb}, s{s_t}, 3
    s_and_b32 s{s_nb}, s{s_t}, 7
    s_cmp_eq_u32 s{s_mode}, 0
    s_cbranch_scc0 {L('r2')}
    """)
    srd(a, sSRC, "wqkv", 640 * 1920 * 2)
    a(f"""
    s_mov_b32 s{s_colA}, 0
    s_mov_b32 s{s_colB}, 640
    s_mov_b32 s{s_rowB}, 3840
    s_mov_b32 s{s_ncols}, 1920
    s_mov_b32 s{s_dst}, {WS['WQKV']}
    s_mov_b32 s{s_pb}, {WS['PBQ']}
    s_mov_b32 s{s_pc}, {WS['PBQ']}
    s_branch {L('gemv')}
    {L('r2')}:
    """)
    srd(a, sSRC, "w_in", 640 * 1728 * 2)
    a(f"""
    s_mov_b32 s{s_colA}, 1920
    s_mov_b32 s{s_colB}, 2560
    s_mov_b32 s{s_rowB}, 3456
    s_mov_b32 s{s_ncols}, 1728
    s_mov_b32 s{s_dst}, {WS['WIN']}
    s_mov_b32 s{s_pb}, {WS['PBI']}
    s_mov_b32 s{s_pc}, {WS['PCS']}
    s_cmp_eq_u32 s{s_nb}, 7
    s_cbranch_scc0 {L('gemv')}
    s_mov_b32 s{s_colA}, 1280
    s_mov_b32 s{s_colB}, 3200
    s_mov_b32 s{s_mode}, 2
    {L('gemv')}:
    s_mov_b32 s{s_KS}, 40
    s_lshl_b32 s{s_t}, s{s_kb}, 5
    s_add_u32 s{s_colA}, s{s_colA}, s{s_t}
    s_add_u32 s{s_colB}, s{s_colB}, s{s_t}
    v_lshrrev_b32 v3, 2, v0
    v_and_b32 v4, 3, v0
    v_lshlrev_b32 v5, 1, v3
    v_mul_u32_u24 v6, 7680, v3
    v_lshl_add_u32 v6, v4, 4, v6
    """)
    vC, vS1, vWM, vW, vAcc = 16, 26, 36, 116, 132
    for j in range(10):
        a(f"buffer_load_ushort v{vC+j}, v5, s[{sC}:{sC+3}], 0 offen offset:{j*128}")
    a(f"""
    s_lshl_b32 s{s_t}, s{s_colA}, 1
    s_lshl_b32 s{s_t2}, s{s_colB}, 1
    """)
    for j in range(10):
        a(f"buffer_load_dwordx4 {vr(vWM+8*j,4)}, v6, s[{sMOD}:{sMOD+3}], s{s_t} offen")
        a(f"buffer_load_dwordx4 {vr(vWM+8*j+4,4)}, v6, s[{sMOD}:{sMOD+3}], s{s_t2} offen")
        if j < 9:
            a(f"s_add_u32 s{s_t}, s{s_t}, {64*7680}")
            a(f"s_add_u32 s{s_t2}, s{s_t2}, {64*7680}")

    def w_setup_and_load(perm=False):
        a(f"""
        s_lshr_b32 s{s_ch}, s{s_w}, 1
        s_lshl_b32 s{s_t}, s{s_nb}, 8
        s_lshl_b32 s{s_t2}, s{s_ch}, 7
        s_add_u32 s{s_t}, s{s_t}, s{s_t2}
        v_lshl_add_u32 v8, v2, 1, s{s_t}
        v_lshlrev_b32 v7, 1, v8
        """)
        if perm:
            a(f"""
            s_cmp_eq_u32 s{s_mode}, 0
            s_cbranch_scc0 {L('noperm')}
            s_lshr_b32 s{s_t}, s{s_t}, 7
            s_cmp_ge_u32 s{s_t}, 10
            s_cbranch_scc1 {L('noperm')}
            s_cmp_ge_u32 s{s_t}, 5
            s_cselect_b32 s{s_t2}, 640, 0
            s_cselect_b32 s{s_f}, 5, 0
            s_sub_u32 s{s_t}, s{s_t}, s{s_f}
            s_cmp_eq_u32 s{s_t}, 4
            s_cbranch_scc1 {L('perm2')}
            s_mul_i32 s{s_t}, s{s_t}, 160
            s_add_u32 s{s_t2}, s{s_t2}, s{s_t}
            v_lshrrev_b32 v9, 3, v2
            v_and_b32 v10, 7, v2
            s_branch {L('perm3')}
            {L('perm2')}:
            s_add_u32 s{s_t2}, s{s_t2}, 16
            v_lshrrev_b32 v9, 1, v2
            v_and_b32 v10, 1, v2
            {L('perm3')}:
            v_mul_u32_u24 v9, 20, v9
            v_lshl_add_u32 v9, v10, 1, v9
            v_add_lshl_u32 v7, v9, s{s_t2}, 1
            {L('noperm')}:
            """)
        a(f"""
        s_mul_i32 s{s_base}, s{s_base}, s{s_rowB}
        s_mul_i32 s{s_h}, s{s_h}, s{s_rowB}
        s_mul_i32 s{s_q}, s{s_q}, s{s_rowB}
        """)
        for h in range(2):
            for q2 in range(2):
                a(f"s_mov_b32 s{s_t}, s{s_base}")
                if h:
                    a(f"s_add_u32 s{s_t}, s{s_t}, s{s_h}")
                if q2:
                    a(f"s_add_u32 s{s_t}, s{s_t}, s{s_q}")
                for r in range(4):
                    j = 8 * h + 4 * q2 + r
                    a(f"buffer_load_dword v{vW+j}, v7, s[{sSRC}:{sSRC+3}], s{s_t} offen")
                    if r < 3:
                        a(f"s_add_u32 s{s_t}, s{s_t}, s{s_rowB}")

    def w_store(vP):
        a(f"""
        v_lshrrev_b32 v9, 4, v2
        s_lshl_b32 s{s_t}, s{s_KS}, 10
        v_mul_lo_u32 v9, v9, s{s_t}
        v_and_b32 v10, 15, v2
        v_lshl_add_u32 v9, v10, 5, v9
        s_lshl_b32 s{s_t}, s{s_nb}, 3
        s_lshl_b32 s{s_t2}, s{s_ch}, 2
        s_add_u32 s{s_t}, s{s_t}, s{s_t2}
        s_mul_i32 s{s_t}, s{s_t}, s{s_KS}
        s_add_u32 s{s_t}, s{s_t}, s{s_ks}
        s_lshl_b32 s{s_t}, s{s_t}, 10
        s_add_u32 s{s_t}, s{s_t}, s{s_dst}
        """)
        for c in range(2):
            for h in range(2):
                a(f"buffer_store_dwordx4 {vr(vP+8*c+4*h,4)}, v9, s[{sWS}:{sWS+3}], s{s_t} offen offset:{c*16+h*512}")

    a(f"""
    s_and_b32 s{s_t}, s{s_w}, 1
    s_lshl_b32 s{s_ks}, s{s_kb}, 1
    s_add_u32 s{s_ks}, s{s_ks}, s{s_t}
    s_lshl_b32 s{s_base}, s{s_ks}, 4
    s_mov_b32 s{s_h}, 4
    s_mov_b32 s{s_q}, 8
    """)
    w_setup_and_load(True)
    for i in range(16):
        a(f"v_mov_b32 v{vAcc+i}, 0")
    a.stamp(0)
    a("s_waitcnt vmcnt(36)")
    a.stamp(1)
    for j in range(10):
        a(f"v_lshlrev_b32 v{vC+j}, 16, v{vC+j}")
    for j in range(10):
        a(f"v_mul_f32 v{vS1+j}, {f32(-1.4426950408889634)}, v{vC+j}")
    for j in range(10):
        a(f"v_exp_f32 v{vS1+j}, v{vS1+j}")
    for j in range(10):
        a(f"v_add_f32 v{vS1+j}, 1.0, v{vS1+j}")
    for j in range(10):
        a(f"v_rcp_f32 v{vS1+j}, v{vS1+j}")
    for j in range(10):
        a(f"v_mul_f32 v{vC+j}, v{vC+j}, v{vS1+j}")
    for j in range(10):
        a(f"v_cvt_pk_bf16_f32 v{vC+j}, v{vC+j}, 0")
    for j in range(10):
        a(f"v_lshlrev_b32 v{vS1+j}, 16, v{vC+j}")
    for j in range(10):
        a(f"s_waitcnt vmcnt({16 + 2*(9-j)})")
        for sl in range(2):
            for d in range(4):
                w = vWM + 8 * j + 4 * sl + d
                a(f"v_dot2_f32_bf16 v{vAcc+8*sl+2*d}, v{w}, v{vC+j}, v{vAcc+8*sl+2*d}")
                a(f"v_dot2_f32_bf16 v{vAcc+8*sl+2*d+1}, v{w}, v{vS1+j}, v{vAcc+8*sl+2*d+1}")
    a.stamp(2)
    for sh in (4, 8):
        for i in range(16):
            a(f"v_add_f32_dpp v{vAcc+i}, v{vAcc+i}, v{vAcc+i} row_shr:{sh} row_mask:0xf bank_mask:0xf bound_ctrl:0")
    a(f"""
    v_lshrrev_b32 v3, 4, v0
    v_lshlrev_b32 v3, 8, v3
    v_lshl_add_u32 v3, v4, 5, v3
    v_and_b32 v5, 12, v0
    v_cmp_eq_u32 vcc, 12, v5
    s_and_saveexec_b64 s[{s_save}:{s_save+1}], vcc
    ds_write_b128 v3, {vr(vAcc,4)}
    ds_write_b128 v3, {vr(vAcc+4,4)} offset:16
    ds_write_b128 v3, {vr(vAcc+8,4)} offset:128
    ds_write_b128 v3, {vr(vAcc+12,4)} offset:144
    s_mov_b64 exec, s[{s_save}:{s_save+1}]
    s_waitcnt lgkmcnt(0)
    s_barrier
    s_cmp_eq_u32 s{s_w}, 0
    s_cbranch_scc0 {L('skipsum')}
    v_lshlrev_b32 v3, 2, v0
    """)
    for i in range(16):
        a(f"ds_read_b32 v{vWM+i}, v3 offset:{i*256}")
    a("s_waitcnt lgkmcnt(0)")
    for st in (8, 4, 2, 1):
        for i in range(st):
            a(f"v_add_f32 v{vWM+i}, v{vWM+i}, v{vWM+i+st}")
    a(f"""
    v_cvt_pk_bf16_f32 v5, v{vWM}, v{vWM}
    v_lshlrev_b32 v5, 16, v5
    s_cmp_eq_u32 s{s_mode}, 2
    s_cbranch_scc0 {L('notmod')}
    v_and_b32 v6, 31, v0
    v_mov_b32 v9, s{s_colA}
    v_mov_b32 v10, s{s_colB}
    v_cmp_gt_u32 vcc, 32, v0
    v_cndmask_b32 v9, v10, v9, vcc
    v_add_lshl_u32 v6, v6, v9, 2
    s_mov_b32 s{s_t}, {WS['MOD']}
    buffer_store_dword v5, v6, s[{sWS}:{sWS+3}], s{s_t} offen
    {L('notmod')}:
    v_add_f32 v6, 1.0, v5
    v_cvt_pk_bf16_f32 v6, v6, v6
    v_lshlrev_b32 v6, 16, v6
    v_cmp_gt_u32 vcc, 32, v0
    v_cndmask_b32 v5, v6, v5, vcc
    ds_write_b32 v3, v5 offset:4096
    s_waitcnt lgkmcnt(0)
    {L('skipsum')}:
    s_cmp_eq_u32 s{s_mode}, 2
    s_cbranch_scc1 {L('end')}
    s_barrier
    """)
    a.stamp(3)
    vSh, vSc, vLo, vHi, vP = 36, 52, 68, 84, 100
    a(f"""
    s_and_b32 s{s_t}, s{s_w}, 1
    s_lshl_b32 s{s_t}, s{s_t}, 6
    v_mov_b32 v3, s{s_t}
    """)
    for h in range(2):
        for q2 in range(2):
            j = 8 * h + 4 * q2
            k = 4 * h + 8 * q2
            a(f"ds_read_b128 {vr(vSh+j,4)}, v3 offset:{4096 + k*4}")
            a(f"ds_read_b128 {vr(vSc+j,4)}, v3 offset:{4096 + 128 + k*4}")
    a(f"""
    s_lshl_b32 s{s_t}, s{s_nb}, 1
    s_add_u32 s{s_t}, s{s_t}, s{s_ch}
    s_cmp_lt_u32 s{s_t}, 5
    s_cselect_b32 s{s_f}, {f32(QSCALE)}, 1.0
    s_cmp_eq_u32 s{s_mode}, 0
    s_cselect_b32 s{s_f}, s{s_f}, 1.0
    s_waitcnt vmcnt(0)
    """)
    for j in range(16):
        a(f"v_lshlrev_b32 v{vLo+j}, 16, v{vW+j}")
        a(f"v_and_b32 v{vHi+j}, 0xffff0000, v{vW+j}")
    a("s_waitcnt lgkmcnt(0)")
    for j in range(16):
        a(f"v_mul_f32 v{vSc+j}, s{s_f}, v{vSc+j}")
    a(f"""
    v_mul_f32 v12, v{vSh}, v{vLo}
    v_mul_f32 v13, v{vSh}, v{vHi}
    """)
    for j in range(1, 16):
        a(f"v_fmac_f32 v12, v{vSh+j}, v{vLo+j}")
        a(f"v_fmac_f32 v13, v{vSh+j}, v{vHi+j}")
    for j in range(16):
        a(f"v_mul_f32 v{vLo+j}, v{vSc+j}, v{vLo+j}")
        a(f"v_mul_f32 v{vHi+j}, v{vSc+j}, v{vHi+j}")
    for d in range(8):
        a(f"v_cvt_pk_bf16_f32 v{vP+d}, v{vLo+2*d}, v{vLo+2*d+1}")
        a(f"v_cvt_pk_bf16_f32 v{vP+8+d}, v{vHi+2*d}, v{vHi+2*d+1}")
    a(f"""
    v_mul_f32 v12, s{s_f}, v12
    v_mul_f32 v13, s{s_f}, v13
    v_mov_b32 v14, 0
    v_mov_b32 v15, 0
    v_mov_b32 v11, 0x3f803f80
    """)
    for d in range(8):
        a(f"v_dot2_f32_bf16 v14, v{vP+d}, v11, v14")
        a(f"v_dot2_f32_bf16 v15, v{vP+8+d}, v11, v15")
    a(f"""
    v_cmp_gt_u32 vcc, s{s_ncols}, v8
    s_and_saveexec_b64 s[{s_save}:{s_save+1}], vcc
    s_cbranch_execz {L('nost')}
    """)
    w_store(vP)
    a(f"""
    {L('nost')}:
    s_mov_b64 exec, s[{s_save}:{s_save+1}]
    v_lshlrev_b32 v3, 4, v2
    s_lshl_b32 s{s_t}, s{s_ch}, 10
    v_add_u32 v3, s{s_t}, v3
    s_and_b32 s{s_t}, s{s_w}, 1
    s_cmp_eq_u32 s{s_t}, 1
    s_cbranch_scc0 {L('nowr')}
    ds_write_b128 v3, v[12:15]
    s_waitcnt lgkmcnt(0)
    {L('nowr')}:
    s_barrier
    s_cmp_eq_u32 s{s_t}, 1
    s_cbranch_scc1 {L('end')}
    ds_read_b128 v[4:7], v3
    s_mul_i32 s{s_t}, s{s_kb}, s{s_ncols}
    s_lshl_b32 s{s_t}, s{s_t}, 2
    s_add_u32 s{s_pb}, s{s_pb}, s{s_t}
    s_add_u32 s{s_pc}, s{s_pc}, s{s_t}
    v_lshlrev_b32 v9, 2, v8
    s_waitcnt lgkmcnt(0)
    v_add_f32 v12, v12, v4
    v_add_f32 v13, v13, v5
    v_add_f32 v14, v14, v6
    v_add_f32 v15, v15, v7
    v_cmp_gt_u32 vcc, s{s_ncols}, v8
    s_and_saveexec_b64 s[{s_save}:{s_save+1}], vcc
    s_cbranch_execz {L('end')}
    buffer_store_dwordx2 v[12:13], v9, s[{sWS}:{sWS+3}], s{s_pb} offen
    s_cmp_eq_u32 s{s_mode}, 0
    s_cbranch_scc1 {L('end')}
    buffer_store_dwordx2 v[14:15], v9, s[{sWS}:{sWS+3}], s{s_pc} offen
    s_branch {L('end')}
    """)
    a(f"""
    {L('not_gemv')}:
    s_cmp_lt_u32 s2, {N_R1 + N_R2 + N_LN}
    s_cbranch_scc1 {L('ln')}
    s_mov_b32 s{s_rowB}, 1280
    s_mov_b32 s{s_ncols}, 640
    s_cmp_lt_u32 s2, {N_R1 + N_R2 + N_LN + N_WO}
    s_cbranch_scc0 {L('wout')}
    """)
    srd(a, sSRC, "wo", 640 * 640 * 2)
    a(f"""
    s_sub_u32 s{s_t}, s2, {N_R1 + N_R2 + N_LN}
    s_mul_i32 s{s_kb}, s{s_t}, 171
    s_lshr_b32 s{s_kb}, s{s_kb}, 9
    s_mul_i32 s{s_t2}, s{s_kb}, 3
    s_sub_u32 s{s_nb}, s{s_t}, s{s_t2}
    s_mov_b32 s{s_KS}, 40
    s_mov_b32 s{s_dst}, {WS['WO']}
    s_and_b32 s{s_t}, s{s_w}, 1
    s_lshl_b32 s{s_ks}, s{s_kb}, 1
    s_add_u32 s{s_ks}, s{s_ks}, s{s_t}
    s_mul_i32 s{s_base}, s{s_ks}, 20
    s_mov_b32 s{s_h}, 4
    s_mov_b32 s{s_q}, 8
    s_cmp_lt_u32 s{s_ks}, 32
    s_cbranch_scc1 {L('r4')}
    s_sub_u32 s{s_t}, s{s_ks}, 32
    s_mul_i32 s{s_base}, s{s_t}, 80
    s_add_u32 s{s_base}, s{s_base}, 16
    s_mov_b32 s{s_h}, 20
    s_mov_b32 s{s_q}, 40
    s_branch {L('r4')}
    {L('wout')}:
    """)
    srd(a, sSRC, "w_out", 864 * 640 * 2)
    a(f"""
    s_sub_u32 s{s_t}, s2, {N_R1 + N_R2 + N_LN + N_WO}
    s_mul_i32 s{s_kb}, s{s_t}, 171
    s_lshr_b32 s{s_kb}, s{s_kb}, 9
    s_mul_i32 s{s_t2}, s{s_kb}, 3
    s_sub_u32 s{s_nb}, s{s_t}, s{s_t2}
    s_mov_b32 s{s_KS}, 54
    s_mov_b32 s{s_dst}, {WS['WOUT']}
    s_and_b32 s{s_t}, s{s_w}, 1
    s_lshl_b32 s{s_ks}, s{s_kb}, 1
    s_add_u32 s{s_ks}, s{s_ks}, s{s_t}
    s_lshl_b32 s{s_base}, s{s_ks}, 4
    s_mov_b32 s{s_h}, 4
    s_mov_b32 s{s_q}, 8
    {L('r4')}:
    """)
    w_setup_and_load()
    a(f"""
    s_mov_b32 s{s_pb}, 0x05040100
    s_mov_b32 s{s_pc}, 0x07060302
    s_waitcnt vmcnt(0)
    """)
    vP = 100
    for d in range(8):
        a(f"v_perm_b32 v{vP+d}, v{vW+2*d+1}, v{vW+2*d}, s{s_pb}")
        a(f"v_perm_b32 v{vP+8+d}, v{vW+2*d+1}, v{vW+2*d}, s{s_pc}")
    a(f"""
    v_cmp_gt_u32 vcc, s{s_ncols}, v8
    s_and_saveexec_b64 s[{s_save}:{s_save+1}], vcc
    s_cbranch_execz {L('end')}
    """)
    w_store(vP)
    a(f"s_branch {L('end')}")
    a(f"{L('ln')}:")
    srd(a, sSRC, "x", S * D * 2)
    vX, vO = 16, 56
    a(f"""
    s_sub_u32 s{s_kb}, s2, {N_R1 + N_R2}
    v_lshrrev_b32 v3, 3, v0
    v_and_b32 v4, 7, v0
    v_mul_u32_u24 v5, 1280, v3
    v_lshl_add_u32 v5, v4, 5, v5
    s_mul_i32 s{s_t}, s{s_kb}, {32*1280}
    """)
    for it in range(5):
        a(f"buffer_load_dwordx4 {vr(vX+8*it,4)}, v5, s[{sSRC}:{sSRC+3}], s{s_t} offen offset:{it*256}")
        a(f"buffer_load_dwordx4 {vr(vX+8*it+4,4)}, v5, s[{sSRC}:{sSRC+3}], s{s_t} offen offset:{it*256+16}")
    a(f"""
    v_mov_b32 v12, -1
    v_mov_b32 v13, -1
    v_mov_b32 v14, -1
    v_mov_b32 v15, -1
    v_lshlrev_b32 v6, 4, v0
    s_lshl_b32 s{s_t2}, s{s_kb}, 12
    s_add_u32 s{s_t2}, s{s_t2}, {WS['ST2']}
    buffer_store_dwordx4 v[12:15], v6, s[{sWS}:{sWS+3}], s{s_t2} offen
    v_mov_b32 v11, 0x3f803f80
    v_mov_b32 v8, 0
    v_mov_b32 v9, 0
    v_mov_b32 v6, 0
    v_mov_b32 v7, 0
    """)
    a.stamp(0)
    a("s_waitcnt vmcnt(1)")
    a.stamp(1)
    for d in range(0, 40, 2):
        a(f"v_dot2_f32_bf16 v8, v{vX+d}, v11, v8")
        a(f"v_dot2_f32_bf16 v9, v{vX+d}, v{vX+d}, v9")
        a(f"v_dot2_f32_bf16 v6, v{vX+d+1}, v11, v6")
        a(f"v_dot2_f32_bf16 v7, v{vX+d+1}, v{vX+d+1}, v7")
    a("""
    v_add_f32 v8, v8, v6
    v_add_f32 v9, v9, v7
    """)
    for dpp in ("quad_perm:[1,0,3,2]", "quad_perm:[2,3,0,1]", "row_half_mirror"):
        a(f"v_add_f32_dpp v8, v8, v8 {dpp} row_mask:0xf bank_mask:0xf")
        a(f"v_add_f32_dpp v9, v9, v9 {dpp} row_mask:0xf bank_mask:0xf")
    a(f"""
    v_mul_f32 v8, {f32(1.0/640)}, v8
    v_mul_f32 v9, {f32(1.0/640)}, v9
    v_fma_f32 v9, -v8, v8, v9
    v_max_f32 v9, 0, v9
    v_cvt_pk_bf16_f32 v9, v9, v8
    v_and_b32 v8, 0xffff0000, v9
    v_lshlrev_b32 v9, 16, v9
    v_add_f32 v9, {f32(1e-5)}, v9
    v_cvt_pk_bf16_f32 v9, v9, v9
    v_lshlrev_b32 v9, 16, v9
    v_sqrt_f32 v9, v9
    v_cvt_pk_bf16_f32 v9, v9, v9
    v_lshlrev_b32 v9, 16, v9
    v_rcp_f32 v9, v9
    v_mul_f32 v8, v8, v9
    v_lshlrev_b32 v5, 10, v4
    v_lshl_add_u32 v5, v3, 4, v5
    s_mul_i32 s{s_t}, s{s_kb}, {40*1024}
    s_add_u32 s{s_t}, s{s_t}, {WS['XH']}
    """)
    pos = {0: 0, 1: 1, 4: 2, 5: 3, 2: 4, 3: 5, 6: 6, 7: 7}
    for it in range(5):
        for d in range(8):
            x = vX + 8 * it + d
            a(f"""
            v_lshlrev_b32 v12, 16, v{x}
            v_and_b32 v13, 0xffff0000, v{x}
            v_fma_f32 v12, v12, v9, -v8
            v_fma_f32 v13, v13, v9, -v8
            v_cvt_pk_bf16_f32 v{vO+8*it+pos[d]}, v12, v13
            """)
        a(f"buffer_store_dwordx4 {vr(vO+8*it,4)}, v5, s[{sWS}:{sWS+3}], s{s_t} offen")
        a(f"buffer_store_dwordx4 {vr(vO+8*it+4,4)}, v5, s[{sWS}:{sWS+3}], s{s_t} offen offset:512")
        if it < 4:
            a(f"s_add_u32 s{s_t}, s{s_t}, 8192")
    a(f"""
    {L('end')}:
    s_endpgm
    """)
```

```python
import sys, os, importlib
sys.path.insert(0, os.path.dirname(__file__))
from asmlib import Asm
from layout import *

NAME = "adaLN_cond__softmax_full_mha__mixer_gmlp__prompt"
REF = f"cdna_kernels/{NAME}.s.ref"


def add_prof(a, kidx):
    from asmlib import Ins
    pre = Asm()
    pre("""
    s_memrealtime s[92:93]
    s_memtime s[94:95]
    v_readfirstlane_b32 s91, v0
    s_mov_b32 s90, s2
    s_mov_b32 s88, 0
    s_mov_b32 s89, 0
    s_mov_b32 s100, 0
    s_mov_b32 s101, 0
    """)
    post = Asm()
    post(f"""
    s_mov_b64 exec, 1
    s_load_dwordx2 s[84:85], s[0:1], 96
    s_memrealtime s[96:97]
    s_memtime s[98:99]
    s_waitcnt vmcnt(0) lgkmcnt(0)
    s_memrealtime s[96:97]
    s_memtime s[98:99]
    s_mov_b32 s86, {WS_SIZE}
    s_mov_b32 s87, 0x00020000
    s_lshr_b32 s91, s91, 1
    s_lshl_b32 s90, s90, 9
    s_add_u32 s90, s90, s91
    s_add_u32 s90, s90, {WS['PROF'] + kidx * 1024 * 256}
    s_waitcnt lgkmcnt(0)
    s_sub_u32 s98, s98, s94
    v_mov_b32 v0, s92
    v_mov_b32 v1, s96
    v_mov_b32 v2, s98
    v_mov_b32 v3, s88
    v_mov_b32 v4, s89
    v_mov_b32 v5, s100
    v_mov_b32 v6, s101
    v_mov_b32 v7, 0
    buffer_store_dwordx4 v[0:3], v7, s[84:87], s90 offen
    buffer_store_dwordx4 v[4:7], v7, s[84:87], s90 offen offset:16
    """)
    items = list(pre.items)
    for it in a.items:
        if it[0] == "i" and it[1].mn == "s_endpgm":
            items += post.items
        items.append(it)
    a.items = items


def build(kernels, out_path, launches=None, prof=False):
    head = []
    for line in open(REF).read().split("\n"):
        if line.startswith("; @launch") or line.startswith("; Override") or line.startswith("; grid=ceil"):
            continue
        if not line.startswith(";"):
            break
        head.append(line)
    if launches is None:
        launches = [k[0] for k in kernels]
    km = {k[0]: k for k in kernels}
    for l in launches:
        label, fn, grid, block, lds = km[l]
        head.append(f"; @launch kernel={label} grid=({grid},1,1) block=({block},1,1) lds={lds}")
    txt = "\n".join(head) + '\n.amdgcn_target "amdgcn-amd-amdhsa--gfx950"\n.text\n'
    desc = '.section .rodata,"a"\n'
    for label, fn, grid, block, lds in kernels:
        a = Asm()
        a.prof = prof
        fn(a, label)
        if prof:
            add_prof(a, [k[0] for k in kernels].index(label))
        body = a.finalize()
        nv, ns = a.max_regs()
        nv = max(nv, 8)
        acc = (nv + 3) // 4 * 4
        na = a.max_acc() if hasattr(a, "max_acc") else 0
        tot = acc + na if na else nv
        txt += f".globl {label}\n.p2align 8\n.type {label},@function\n{label}:\n{body}"
        desc += f""".p2align 6
.amdhsa_kernel {label}
  .amdhsa_next_free_vgpr {tot}
  .amdhsa_next_free_sgpr 102
  .amdhsa_accum_offset {acc}
  .amdhsa_group_segment_fixed_size 0
  .amdhsa_kernarg_size 104
  .amdhsa_user_sgpr_count 2
  .amdhsa_user_sgpr_kernarg_segment_ptr 1
  .amdhsa_system_sgpr_workgroup_id_x 1
.end_amdhsa_kernel
"""
        print(f"{label}: vgpr={nv} agpr={na} sgpr={ns} lines={body.count(chr(10))}", file=sys.stderr)
    open(out_path, "w").write(txt + desc)


def kernel_list():
    ks = []
    for mod, fn in (("k1", "gen_k1"), ("k2", "gen_k2"), ("k3", "gen_k3"), ("k4", "gen_k4"), ("k5", "gen_k5"), ("k6", "gen_k6")):
        if not os.path.exists(os.path.join(os.path.dirname(__file__), mod + ".py")):
            break
        m = importlib.import_module(mod)
        ks.append((mod + "_kernel", getattr(m, fn), m.GRID, m.BLOCK, m.LDS))
    return ks


if __name__ == "__main__":
    out = sys.argv[1] if len(sys.argv) > 1 else f"cdna_kernels/{NAME}.s"
    build(kernel_list(), out, prof="--prof" in sys.argv)
```

```python
S, D, H, DH = 2048, 640, 32, 20
F, FH = 1728, 864
NQKV = 1920

KA = dict(x=0, wqkv=8, wo=16, bx=24, w_in=32, w_sp=40, b_sp=48, w_out=56, c=64, w_mod=72, out=80, dbg=88, ws=96)

WS_SIZE = 268435456

_off = 0
WS = {}


def _alloc(name, nbytes):
    global _off
    WS[name] = _off
    _off += (nbytes + 4095) // 4096 * 4096


_alloc("MOD", 2 * 3840 * 4)
_alloc("MODF", 3840 * 4)
_alloc("PCS", 20 * F * 4 + 4096)
_alloc("PBI", 20 * F * 4 + 4096)
_alloc("ST1", S * 32 * 8)
_alloc("ST2", S * 16 * 8)
_alloc("WIN", 56 * 40 * 1024)
_alloc("WO", 20 * 40 * 1024)
_alloc("WOUT", 20 * 54 * 1024 + 65536)
_alloc("QF1", H * 64 * 1024)
_alloc("QF2", 16 * 64 * 512)
_alloc("KF1", H * 64 * 1024)
_alloc("KF2", 16 * 64 * 512)
_alloc("VI", H * 64 * 1280 + 4096)
_alloc("O", 64 * 40 * 1024)
_alloc("X1", 64 * 40 * 1024)
_alloc("Z1", 64 * 54 * 1024 + 65536)
_alloc("Z2N", 28 * S * 64)
_alloc("U", 64 * 54 * 1024 + 65536)
_alloc("PROF", 8 * 1024 * 256)
WS_USED = _off

QSCALE = (DH ** -0.5) * 1.4426950408889634


def qk_perm():
    src = []
    for c in range(640):
        at, r = divmod(c, 32)
        if at < 16:
            src.append(40 * at + 20 * (r >> 4) + (r & 15))
        else:
            src.append(160 * (at - 16) + 20 * (r >> 2) + 16 + (r & 3))
    return src
```
